```python
import torch

def _softmax(x, axis=-1):
    return torch.softmax(x, dim=axis)
def _gelu(x):
    return torch.nn.functional.gelu(x, approximate="tanh")
def _silu(x):
    return torch.nn.functional.silu(x)
def _sigmoid(x):
    return torch.sigmoid(x)
def _layernorm(x, axis=-1, eps=1e-5):
    m = x.mean(dim=axis, keepdim=True)
    v = x.var(dim=axis, keepdim=True, unbiased=False)
    return (x - m) / torch.sqrt(v + eps)
def _scatter_add(tgt, idx, src, axis=0):
    return tgt.clone().index_add_(axis, idx, src)
def _segment_sum(src, seg, n):
    out = torch.zeros((n,) + src.shape[1:], dtype=src.dtype)
    return out.index_add_(0, seg, src)
def _pad(x, pw):
    flat = tuple(v for pair in reversed(pw) for v in pair)
    return torch.nn.functional.pad(x, flat)

kernel_name = 'standalone__glu_gated_glu__decode'

def setup_inputs():

    _w = (lambda a: (lambda t: t.to(torch.bfloat16) if t.is_floating_point() else t)(torch.as_tensor(a)))
    B, S, D, F = 1, 1, 1024, 3584
    return {
        "x": _w((lambda *s: torch.randn(*s, dtype=torch.bfloat16) * 0.1)(B, S, D)),
        "w_gate": _w((lambda *s: torch.randn(*s, dtype=torch.bfloat16) * 0.1)(D, F)),
        "w_up": _w((lambda *s: torch.randn(*s, dtype=torch.bfloat16) * 0.05)(D, F)),
        "w_down": _w((lambda *s: torch.randn(*s, dtype=torch.bfloat16) * 0.05)(F, D)),
    }

def reference(x, w_gate, w_up, w_down):
    g = torch.einsum("bsd,df->bsf", x, w_gate)
    u = torch.einsum("bsd,df->bsf", x, w_up)
    h = _sigmoid(g) * u
    return torch.einsum("bsf,fd->bsd", h, w_down)
```

```python
import sys

HEADER = """; Kernarg layout for this problem (56 bytes, ptrs only, base s[0:1]):
"""

NAME = "standalone__glu_gated_glu__decode_kernel"


def gen(nt=True, xcdmap=True, stamps=False, timeout=1 << 20):
    o = []
    e = o.append
    NT = " nt" if nt else ""
    H1 = 4096
    H2 = 4096 + 224 * 1024
    WS_BYTES = H2 + 64 * 7168
    STAMP = 1 << 20
    if stamps:
        WS_BYTES = STAMP + 224 * 4 * 64
    e(HEADER.rstrip())
    e("; @launch grid=(224,1,1) block=(256,1,1) lds=4352")
    e('.amdgcn_target "amdgcn-amd-amdhsa--gfx950"')
    e(".text")
    e(f".globl {NAME}")
    e(".p2align 8")
    e(f".type {NAME},@function")
    e(f"{NAME}:")
    SX, SG, SU, SD, SO, SW = 4, 8, 12, 16, 20, 24
    srd = lambda b: f"s[{b}:{b+3}]"
    e("    s_cmp_ge_u32 s2, 224")
    e("    s_cbranch_scc1 L_end")
    if stamps:
        e("    s_memrealtime s[60:61]")
    e(f"    s_load_dwordx2 s[{SX}:{SX+1}], s[0:1], 0")
    e(f"    s_load_dwordx2 s[{SG}:{SG+1}], s[0:1], 8")
    e(f"    s_load_dwordx2 s[{SU}:{SU+1}], s[0:1], 16")
    e(f"    s_load_dwordx2 s[{SD}:{SD+1}], s[0:1], 24")
    e(f"    s_load_dwordx2 s[{SO}:{SO+1}], s[0:1], 32")
    e(f"    s_load_dwordx2 s[{SW}:{SW+1}], s[0:1], 48")
    e(f"    s_movk_i32 s{SX+2}, 2048")
    e(f"    s_mov_b32 s{SX+3}, 0x20000")
    e(f"    s_mov_b32 s{SG+2}, {1024*7168}")
    e(f"    s_mov_b32 s{SG+3}, 0x20000")
    e(f"    s_mov_b32 s{SU+2}, {1024*7168}")
    e(f"    s_mov_b32 s{SU+3}, 0x20000")
    e(f"    s_mov_b32 s{SD+2}, {3584*2048}")
    e(f"    s_mov_b32 s{SD+3}, 0x20000")
    e(f"    s_movk_i32 s{SO+2}, 2048")
    e(f"    s_mov_b32 s{SO+3}, 0x20000")
    e(f"    s_mov_b32 s{SW+2}, {WS_BYTES}")
    e(f"    s_mov_b32 s{SW+3}, 0x20000")
    if xcdmap:
        e("    s_and_b32 s3, s2, 7")
        e("    s_mul_i32 s3, s3, 7")
        e("    s_lshr_b32 s39, s2, 3")
        e("    s_lshr_b32 s38, s39, 2")
        e("    s_add_u32 s38, s38, s3")
        e("    s_and_b32 s39, s39, 3")
    else:
        e("    s_lshr_b32 s38, s2, 2")
        e("    s_and_b32 s39, s2, 3")
    for t in range(1, 8):
        e(f"    s_mov_b32 s{27+t}, {t*7168}")
    for t in range(1, 4):
        e(f"    s_movk_i32 s{34+t}, {t*4096}")
    e("    v_and_b32 v10, 63, v0")
    e("    v_lshrrev_b32 v11, 6, v0")
    e("    v_bfe_u32 v12, v0, 3, 1")
    e("    v_bfe_u32 v13, v0, 4, 2")
    e("    v_lshl_add_u32 v12, v12, 2, v13")
    e("    v_and_b32 v13, 7, v0")
    e("    v_readfirstlane_b32 s40, v11")
    e("    s_lshl_b32 s3, s39, 8")
    e("    v_lshl_add_u32 v14, v11, 6, s3")
    e("    v_lshl_add_u32 v15, v12, 3, v14")
    e("    v_lshlrev_b32 v2, 1, v15")
    e("    v_mul_u32_u24 v1, 7168, v15")
    e("    s_lshl_b32 s3, s38, 7")
    e("    v_lshl_add_u32 v16, v13, 4, s3")
    e("    v_add_u32 v1, v1, v16")
    e("    s_lshl_b32 s3, s38, 17")
    e("    v_lshl_add_u32 v3, v12, 14, s3")
    e("    v_lshl_add_u32 v3, v14, 1, v3")
    e("    v_lshl_add_u32 v3, v13, 4, v3")
    e("    v_and_b32 v16, 1, v0")
    e("    v_lshlrev_b32 v16, 4, v16")
    e("    v_mov_b32 v17, 0xffff")
    e("    v_lshlrev_b32 v16, v16, v17")
    e("    v_bfe_u32 v17, v0, 1, 2")
    for m in range(4):
        e(f"    v_cmp_eq_u32 vcc, {m}, v17")
        e("    s_nop 1")
        e(f"    v_cndmask_b32 v{4+m}, 0, v16, vcc")
    G, U, W = 44, 76, 108
    DG, DU, D2 = 140, 144, 148
    for r in range(DG, DG + 12):
        e(f"    v_mov_b32 v{r}, 0")
    e("    s_waitcnt lgkmcnt(0)")
    if stamps:
        e("    s_memrealtime s[62:63]")
    e(f"    buffer_load_dwordx4 v[8:11], v2, {srd(SX)}, 0 offen")
    e(f"    s_load_dword s41, s[{SW}:{SW+1}], 0")
    for t in range(8):
        so = "0" if t == 0 else f"s{27+t}"
        e(f"    buffer_load_dwordx4 v[{G+4*t}:{G+4*t+3}], v1, {srd(SG)}, {so} offen{NT}")
        e(f"    buffer_load_dwordx4 v[{U+4*t}:{U+4*t+3}], v1, {srd(SU)}, {so} offen{NT}")
    for t in range(8):
        so = "0" if t < 2 else f"s{34+t//2}"
        off = " offset:2048" if t & 1 else ""
        e(f"    buffer_load_dwordx4 v[{W+4*t}:{W+4*t+3}], v3, {srd(SD)}, {so} offen{off}{NT}")
    e("    v_lshrrev_b32 v152, 5, v0")
    e("    v_lshlrev_b32 v152, 9, v152")
    e("    v_lshl_add_u32 v152, v13, 5, v152")
    e("    v_bfe_u32 v153, v0, 4, 1")
    e("    v_lshl_add_u32 v152, v153, 4, v152")
    e("    v_and_b32 v154, 63, v0")
    e("    v_lshlrev_b32 v155, 2, v154")
    e("    v_lshlrev_b32 v156, 4, v12")
    e("    v_lshlrev_b32 v157, 1, v154")
    e("    s_lshl_b32 s3, s38, 12")
    e(f"    s_add_u32 s3, s3, {H1}")
    e("    v_lshl_add_u32 v158, v154, 4, s3")
    e("    s_lshl_b32 s43, s39, 10")
    e("    s_mov_b32 s44, 0x01000100")
    e("    s_mov_b32 s45, 0x03020302")

    def build_a(src, t, dst, tmp):
        e(f"    v_perm_b32 v{tmp}, v{src+t//2}, v{src+t//2}, s{44+(t&1)}")
        for m in range(4):
            e(f"    v_and_b32 v{dst+m}, v{tmp}, v{4+m}")

    A = 12
    e("    s_waitcnt vmcnt(24)")
    for t in range(8):
        build_a(8, t, A + 4 * t, 159)
    e("    s_waitcnt lgkmcnt(0)")
    e("    s_add_u32 s41, s41, 1")
    for t in range(8):
        e(f"    s_waitcnt vmcnt({23-2*t})")
        e(f"    v_mfma_f32_16x16x32_bf16 v[{DG}:{DG+3}], v[{A+4*t}:{A+4*t+3}], v[{G+4*t}:{G+4*t+3}], v[{DG}:{DG+3}]")
        e(f"    s_waitcnt vmcnt({22-2*t})")
        e(f"    v_mfma_f32_16x16x32_bf16 v[{DU}:{DU+3}], v[{A+4*t}:{A+4*t+3}], v[{U+4*t}:{U+4*t+3}], v[{DU}:{DU+3}]")
    if stamps:
        e("    s_memrealtime s[64:65]")
    e("    s_mov_b32 exec_lo, 0x00ff00ff")
    e("    s_mov_b32 exec_hi, 0xff00ff00")
    e("    s_nop 5")
    e(f"    ds_write_b128 v152, v[{DG}:{DG+3}]")
    e(f"    ds_write_b128 v152, v[{DU}:{DU+3}] offset:256")
    e("    s_mov_b64 exec, -1")
    e("    s_waitcnt lgkmcnt(0)")
    e("    s_barrier")
    e("    s_cmp_lg_u32 s40, 0")
    e("    s_cbranch_scc1 L_wait_h")
    P = 44
    for k in range(8):
        e(f"    ds_read2st64_b32 v[{P+2*k}:{P+2*k+1}], v155 offset0:{2*k} offset1:{2*k+1}")
    e("    v_mov_b32 v61, s41")
    e("    v_mov_b32 v63, s41")
    e("    s_waitcnt lgkmcnt(0)")
    for mat in range(2):
        r = lambda k: P + 2 * k + mat
        e(f"    v_add_f32 v{r(0)}, v{r(0)}, v{r(1)}")
        e(f"    v_add_f32 v{r(2)}, v{r(2)}, v{r(3)}")
        e(f"    v_add_f32 v{r(4)}, v{r(4)}, v{r(5)}")
        e(f"    v_add_f32 v{r(6)}, v{r(6)}, v{r(7)}")
        e(f"    v_add_f32 v{r(0)}, v{r(0)}, v{r(2)}")
        e(f"    v_add_f32 v{r(4)}, v{r(4)}, v{r(6)}")
        e(f"    v_add_f32 v{60+2*mat}, v{r(0)}, v{r(4)}")
    e(f"    buffer_store_dwordx4 v[60:63], v158, {srd(SW)}, s43 offen sc1")
    e(f"    s_mov_b32 s46, {timeout}")
    Q = 76
    e("L_poll1:")
    for q in range(4):
        off = f" offset:{q*1024}" if q else ""
        e(f"    buffer_load_dwordx4 v[{Q+4*q}:{Q+4*q+3}], v158, {srd(SW)}, 0 offen{off} sc1")
    e("    s_sub_u32 s46, s46, 1")
    e("    s_cbranch_scc1 L_poll1_done")
    e("    s_waitcnt vmcnt(0)")
    for q in range(4):
        e(f"    v_cmpx_eq_u32 vcc, s41, v{Q+4*q+1}")
        e(f"    v_cmpx_eq_u32 vcc, s41, v{Q+4*q+3}")
    e("    s_cmp_eq_u64 exec, -1")
    e("    s_mov_b64 exec, -1")
    e("    s_cbranch_scc0 L_poll1")
    e("L_poll1_done:")
    e("    s_waitcnt vmcnt(0)")
    if stamps:
        e("    s_memrealtime s[66:67]")
    e(f"    v_add_f32 v60, v{Q}, v{Q+4}")
    e(f"    v_add_f32 v61, v{Q+8}, v{Q+12}")
    e(f"    v_add_f32 v62, v{Q+2}, v{Q+6}")
    e(f"    v_add_f32 v63, v{Q+10}, v{Q+14}")
    e("    v_add_f32 v60, v60, v61")
    e("    v_add_f32 v62, v62, v63")
    e("    v_cvt_pk_bf16_f32 v60, v60, v62")
    e("    v_lshlrev_b32 v61, 16, v60")
    e("    v_and_b32 v62, 0xffff0000, v60")
    e("    v_mul_f32 v61, 0xbfb8aa3b, v61")
    e("    v_exp_f32 v61, v61")
    e("    s_nop 0")
    e("    v_add_f32 v61, 1.0, v61")
    e("    v_rcp_f32 v61, v61")
    e("    s_nop 0")
    e("    v_cvt_pk_bf16_f32 v61, v61, v61")
    e("    v_lshlrev_b32 v61, 16, v61")
    e("    v_mul_f32 v61, v61, v62")
    e("    v_cvt_pk_bf16_f32 v61, v61, v61")
    e("    ds_write_b16 v157, v61 offset:4096")
    e("    s_waitcnt lgkmcnt(0)")
    e("L_wait_h:")
    e("    s_barrier")
    e("    ds_read_b128 v[8:11], v156 offset:4096")
    e("    v_and_b32 v160, 7, v0")
    e("    v_lshrrev_b32 v161, 1, v160")
    e("    s_lshl_b32 s3, s39, 4")
    e("    s_lshl_b32 s47, s40, 2")
    e("    s_add_u32 s3, s3, s47")
    e("    v_add_u32 v161, s3, v161")
    e("    v_mul_u32_u24 v161, 7168, v161")
    e("    v_and_b32 v160, 1, v0")
    e("    v_lshl_add_u32 v161, v160, 6, v161")
    e("    v_bfe_u32 v160, v0, 4, 1")
    e("    v_lshl_add_u32 v161, v160, 5, v161")
    e("    v_bfe_u32 v160, v0, 5, 1")
    e("    v_lshl_add_u32 v161, v160, 4, v161")
    e("    s_lshl_b32 s3, s38, 7")
    e(f"    s_add_u32 s48, s3, {H2}")
    e("    v_mov_b32 v165, s41")
    e("    v_mov_b32 v167, s41")
    e("    s_waitcnt lgkmcnt(0)")
    for t in range(8):
        build_a(8, t, A + 4 * t, 159)
    for t in range(8):
        e(f"    s_waitcnt vmcnt({7-t})")
        e(f"    v_mfma_f32_16x16x32_bf16 v[{D2}:{D2+3}], v[{A+4*t}:{A+4*t+3}], v[{W+4*t}:{W+4*t+3}], v[{D2}:{D2+3}]")
    e("    s_nop 7")
    e(f"    v_permlane32_swap_b32 v{D2}, v{D2+2}")
    e(f"    v_permlane32_swap_b32 v{D2+1}, v{D2+3}")
    e("    s_nop 1")
    e(f"    v_add_f32_dpp v164, v{D2+2}, v{D2} row_ror:8 row_mask:0xf bank_mask:0xf")
    e(f"    v_add_f32_dpp v166, v{D2+3}, v{D2+1} row_ror:8 row_mask:0xf bank_mask:0xf")
    e("    s_mov_b32 exec_lo, 0x00ff00ff")
    e("    s_mov_b32 exec_hi, 0x00ff00ff")
    e(f"    buffer_store_dwordx4 v[164:167], v161, {srd(SW)}, s48 offen sc1")
    e("    s_mov_b64 exec, -1")
    if stamps:
        e("    s_memrealtime s[68:69]")
    e("    s_cmp_lg_u32 s40, 1")
    e("    s_cbranch_scc1 L_fin")
    e("    s_cmp_ge_u32 s2, 64")
    e("    s_cbranch_scc1 L_fin")
    e("    s_mul_i32 s3, s2, 7168")
    e(f"    s_add_u32 s49, s3, {H2}")
    e(f"    s_add_u32 s50, s3, {H2+4096}")
    e("    v_lshlrev_b32 v158, 4, v154")
    e(f"    s_mov_b32 s46, {timeout}")
    R = 44
    e("L_poll2:")
    for k in range(7):
        so = "s49" if k < 4 else "s50"
        off = f" offset:{(k&3)*1024}" if k & 3 else ""
        e(f"    buffer_load_dwordx4 v[{R+4*k}:{R+4*k+3}], v158, {srd(SW)}, {so} offen{off} sc1")
    e("    s_sub_u32 s46, s46, 1")
    e("    s_cbranch_scc1 L_poll2_done")
    e("    s_waitcnt vmcnt(0)")
    for k in range(7):
        e(f"    v_cmpx_eq_u32 vcc, s41, v{R+4*k+1}")
        e(f"    v_cmpx_eq_u32 vcc, s41, v{R+4*k+3}")
    e("    s_cmp_eq_u64 exec, -1")
    e("    s_mov_b64 exec, -1")
    e("    s_cbranch_scc0 L_poll2")
    e("L_poll2_done:")
    e("    s_waitcnt vmcnt(0)")
    for c in range(2):
        r = lambda k: R + 4 * k + 2 * c
        e(f"    v_add_f32 v{r(0)}, v{r(0)}, v{r(1)}")
        e(f"    v_add_f32 v{r(2)}, v{r(2)}, v{r(3)}")
        e(f"    v_add_f32 v{r(4)}, v{r(4)}, v{r(5)}")
        e(f"    v_add_f32 v{r(0)}, v{r(0)}, v{r(6)}")
        e(f"    v_add_f32 v{r(2)}, v{r(2)}, v{r(4)}")
        e(f"    v_add_f32 v{r(0)}, v{r(0)}, v{r(2)}")
    a, b = R, R + 2
    e("    s_nop 1")
    e(f"    v_permlane32_swap_b32 v{a}, v{b}")
    e("    s_nop 1")
    e(f"    v_add_f32 v{a}, v{a}, v{b}")
    e(f"    v_mov_b32 v{b}, v{a}")
    e("    s_nop 1")
    e(f"    v_permlane16_swap_b32 v{a}, v{b}")
    e("    s_nop 1")
    e(f"    v_add_f32 v{a}, v{a}, v{b}")
    e("    s_nop 1")
    e(f"    v_add_f32_dpp v{a}, v{a}, v{a} row_ror:8 row_mask:0xf bank_mask:0xf")
    e(f"    v_cvt_pk_bf16_f32 v{a}, v{a}, v{a}")
    e("    v_and_b32 v160, 7, v0")
    e("    v_lshlrev_b32 v160, 2, v160")
    e("    v_bfe_u32 v161, v0, 5, 1")
    e("    v_lshl_add_u32 v160, v161, 1, v160")
    e("    s_lshl_b32 s3, s2, 5")
    e("    s_mov_b32 exec_lo, 0xff")
    e("    s_mov_b32 exec_hi, 0xff")
    e(f"    buffer_store_short v{a}, v160, {srd(SO)}, s3 offen")
    e("    s_cmp_lg_u32 s2, 0")
    e("    s_cbranch_scc1 L_fin")
    e("    s_mov_b64 exec, 1")
    e("    v_mov_b32 v160, 0")
    e("    v_mov_b32 v161, s41")
    e(f"    buffer_store_dword v161, v160, {srd(SW)}, 0 offen")
    e("L_fin:")
    if stamps:
        e("    s_memrealtime s[70:71]")
        e("    s_mov_b64 exec, 1")
        e("    s_lshl_b32 s3, s2, 2")
        e("    s_add_u32 s3, s3, s40")
        e("    s_lshl_b32 s3, s3, 6")
        e(f"    s_add_u32 s3, s3, {STAMP}")
        e("    s_waitcnt lgkmcnt(0)")
        e("    v_mov_b32 v160, 0")
        for i in range(6):
            e(f"    v_mov_b32 v{44+i}, s{60+2*i}")
        e("    s_getreg_b32 s60, hwreg(HW_REG_XCC_ID)")
        e("    s_getreg_b32 s61, hwreg(HW_REG_HW_ID)")
        e("    v_mov_b32 v50, s60")
        e("    v_mov_b32 v51, s61")
        e(f"    buffer_store_dwordx4 v[44:47], v160, {srd(SW)}, s3 offen")
        e(f"    buffer_store_dwordx4 v[48:51], v160, {srd(SW)}, s3 offen offset:16")
    e("L_end:")
    e("    s_endpgm")
    e('.section .rodata,"a"')
    e(".p2align 6")
    e(f".amdhsa_kernel {NAME}")
    e("  .amdhsa_next_free_vgpr 168")
    e("  .amdhsa_next_free_sgpr 80")
    e("  .amdhsa_accum_offset 168")
    e("  .amdhsa_group_segment_fixed_size 0")
    e("  .amdhsa_kernarg_size 56")
    e("  .amdhsa_user_sgpr_count 2")
    e("  .amdhsa_user_sgpr_kernarg_segment_ptr 1")
    e("  .amdhsa_system_sgpr_workgroup_id_x 1")
    e("  .amdhsa_float_denorm_mode_32 3")
    e(".end_amdhsa_kernel")
    return "\n".join(o) + "\n"


if __name__ == "__main__":
    kw = {}
    out = sys.argv[1]
    for a in sys.argv[2:]:
        k, v = a.split("=")
        kw[k] = int(v)
    open(out, "w").write(gen(**kw))
```
